```python
import torch

def _softmax(x, axis=-1):
    return torch.softmax(x, dim=axis)
def _gelu(x):
    return torch.nn.functional.gelu(x, approximate="tanh")
def _silu(x):
    return torch.nn.functional.silu(x)
def _sigmoid(x):
    return torch.sigmoid(x)
def _layernorm(x, axis=-1, eps=1e-5):
    m = x.mean(dim=axis, keepdim=True)
    v = x.var(dim=axis, keepdim=True, unbiased=False)
    return (x - m) / torch.sqrt(v + eps)
def _scatter_add(tgt, idx, src, axis=0):
    return tgt.clone().index_add_(axis, idx, src)
def _segment_sum(src, seg, n):
    out = torch.zeros((n,) + src.shape[1:], dtype=src.dtype)
    return out.index_add_(0, seg, src)
def _pad(x, pw):
    flat = tuple(v for pair in reversed(pw) for v in pair)
    return torch.nn.functional.pad(x, flat)

kernel_name = 'gated_mix__sliding_block__dense_activation_mish__prompt'

def setup_inputs():

    _w = (lambda a: (lambda t: t.to(torch.bfloat16) if t.is_floating_point() else t)(torch.as_tensor(a)))
    def _A_setup():
        B, S, D = 1, 2048, 512
        return {
            "x": _w((lambda *s: torch.randn(*s, dtype=torch.bfloat16) * 0.05)(B, S, D)),
            "wqkv": _w((lambda *s: torch.randn(*s, dtype=torch.bfloat16) * 0.8)(D, 3 * D)),
            "wo": _w((lambda *s: torch.randn(*s, dtype=torch.bfloat16) * 0.05)(D, D)),
        }
    _A_in = _A_setup()

    def _B_setup():
        B, S, D, F = 1, 2048, 512, 1376
        return {
            "x": _w((lambda *s: torch.randn(*s, dtype=torch.bfloat16) * 0.05)(B, S, D)),
            "w1": _w((lambda *s: torch.randn(*s, dtype=torch.bfloat16) * 12.8)(D, F) * (D ** -0.5)),
            "b1": _w((lambda *s: torch.randn(*s, dtype=torch.bfloat16) * 0.8)(F)),
            "w2": _w((lambda *s: torch.randn(*s, dtype=torch.bfloat16) * 0.8)(F, D) * (F ** -0.5)),
        }
    _B_in = _B_setup()

    return {
        "A_x": _A_in["x"],
        "A_wqkv": _A_in["wqkv"],
        "A_wo": _A_in["wo"],
        "B_x": _B_in["x"],
        "B_w1": _B_in["w1"],
        "B_b1": _B_in["b1"],
        "B_w2": _B_in["w2"],
        "gate_w": _w((lambda *s: torch.randn(*s, dtype=torch.bfloat16) * 0.05)(512) * 16.0),
    }

def reference(A_x, A_wqkv, A_wo, B_x, B_w1, B_b1, B_w2, gate_w):
    def _A_ref(x, wqkv, wo):
        B, S, D = x.shape
        H = 32; Dh = D // H; W = 256
        qkv = (lambda x, *d: x.permute(*d))((x @ wqkv).reshape(B, S, 3, H, Dh), 2, 0, 3, 1, 4)
        q, k, v = qkv[0], qkv[1], qkv[2]
        scores = torch.einsum("bhqd,bhkd->bhqk", q, k) * (Dh ** -0.5)
        idx = torch.arange(S)
        mask = (idx[:, None] - idx[None, :] >= 0) & (idx[:, None] - idx[None, :] < W)
        scores = torch.where(mask[None, None], scores, -1e9)
        p = _softmax(scores, axis=-1)
        o = torch.einsum("bhqk,bhkd->bhqd", p, v)
        return (lambda x, *d: x.permute(*d))(o, 0, 2, 1, 3).reshape(B, S, D) @ wo

    def _B_ref(x, w1, b1, w2):
        h = torch.einsum("bsd,df->bsf", x, w1) + b1
        sp = torch.log1p(torch.exp(-torch.abs(h))) + torch.where(h > 0, h, torch.zeros_like(h))
        act = h * torch.tanh(sp)
        return torch.einsum("bsf,fd->bsd", act, w2)

    x = A_x
    g = _sigmoid((x * gate_w).sum(-1, keepdims=True))
    a = _A_ref(x, A_wqkv, A_wo)
    b = _B_ref(x, B_w1, B_b1, B_w2)
    return g * a + (1 - g) * b
```

```python
class Asm:
    def __init__(self):
        self.lines = []
        self._lab = 0
    def __call__(self, s=""):
        for ln in s.split("\n"):
            self.lines.append("    " + ln.strip() if ln.strip() else "")
    def label(self, name):
        self.lines.append(name + ":")
    def newlabel(self, prefix="L"):
        self._lab += 1
        return f"{prefix}_{self._lab}"
    def comment(self, s):
        self.lines.append("    ; " + s)
    def raw(self, s):
        self.lines.append(s)
    def text(self):
        return "\n".join(self.lines) + "\n"

def v(i, n=1):
    return f"v{i}" if n == 1 else f"v[{i}:{i+n-1}]"
def s(i, n=1):
    return f"s{i}" if n == 1 else f"s[{i}:{i+n-1}]"

def f32bits(x):
    import struct
    return struct.unpack("<I", struct.pack("<f", x))[0]
def hexf(x):
    return "0x%08x" % f32bits(x)

def kernel_desc(name, vgpr, sgpr=102, accum=None):
    if accum is None:
        accum = (vgpr + 3) // 4 * 4
    return f""".section .rodata,"a"
.p2align 6
.amdhsa_kernel {name}
  .amdhsa_next_free_vgpr {vgpr}
  .amdhsa_next_free_sgpr {sgpr}
  .amdhsa_accum_offset {accum}
  .amdhsa_group_segment_fixed_size 0
  .amdhsa_kernarg_size 88
  .amdhsa_user_sgpr_count 2
  .amdhsa_user_sgpr_kernarg_segment_ptr 1
  .amdhsa_system_sgpr_workgroup_id_x 1
.end_amdhsa_kernel
"""
```

```python
import math, sys
from asmlib import *

NAME = "gated_mix__sliding_block__dense_activation_mish__prompt"
WS_Q, WS_K, WS_V, WS_A3, WS_G = 0x0, 0x200000, 0x400000, 0x600000, 0xE00000
WS_BYTES = 0x1000000
NKS = 118
LOG2E = 1.4426950408889634
QSCALE = 0.25 * LOG2E
STAGE = 40960

def srd(a, d, base, nbytes):
    a(f"s_mov_b32 s{d}, s{base}")
    a(f"s_and_b32 s{d+1}, s{base+1}, 0xffff")
    a(f"s_mov_b32 s{d+2}, {nbytes}")
    a(f"s_mov_b32 s{d+3}, 0x00020000")

def gen_k1(a):
    K = "p1_kernel"
    a.raw(f".globl {K}\n.p2align 8\n.type {K},@function")
    a.label(K)
    a("s_cmp_ge_u32 s2, 256")
    a("s_cbranch_scc1 K1_END")
    a("s_load_dwordx4 s[4:7], s[0:1], 0")
    a("s_load_dwordx4 s[8:11], s[0:1], 32")
    a("s_load_dwordx2 s[12:13], s[0:1], 56")
    a("s_load_dwordx2 s[14:15], s[0:1], 80")
    a("v_lshrrev_b32 v2, 6, v0")
    a("v_and_b32 v1, 63, v0")
    a("s_and_b32 s16, s2, 7")
    a("s_lshr_b32 s17, s2, 3")
    a("v_readfirstlane_b32 s24, v2")
    a("s_and_b32 s18, s16, 1")
    a("s_lshl_b32 s18, s18, 3")
    a("s_and_b32 s19, s17, 7")
    a("s_add_u32 s20, s18, s19")
    a("s_lshr_b32 s18, s16, 1")
    a("s_lshl_b32 s18, s18, 2")
    a("s_lshr_b32 s19, s17, 3")
    a("s_add_u32 s21, s18, s19")
    a("s_and_b32 s22, s21, 1")
    a("s_lshr_b32 s23, s21, 1")
    a("s_mul_i32 s25, s23, 6")
    a("s_mul_i32 s26, s23, 5")
    a("s_add_u32 s26, s26, 3")
    a("s_min_u32 s25, s25, s26")
    a("s_cmp_ge_u32 s23, 3")
    a("s_cselect_b32 s27, s22, 0")
    a("s_cmp_eq_u32 s23, 7")
    a("s_cselect_b32 s28, s22, 0")
    a("s_cmp_ge_u32 s24, 4")
    a("s_cbranch_scc1 K1_LOADER")
    a("s_branch K1_CONSUMER")

    a.label("K1_LOADER")
    a("s_sub_u32 s24, s24, 4")
    a("v_lshrrev_b32 v4, 3, v1")
    a("v_lshrrev_b32 v5, 4, v1")
    a("v_and_b32 v6, 7, v1")
    a("v_xor_b32 v7, v6, v5")
    a("v_xor_b32 v8, 4, v7")
    a("s_lshl_b32 s29, s20, 7")
    a("s_lshl_b32 s30, s24, 5")
    a("s_add_u32 s29, s29, s30")
    a("v_add_u32 v4, s29, v4")
    a("v_lshlrev_b32 v4, 10, v4")
    a("v_lshl_add_u32 v2, v7, 4, v4")
    a("v_lshl_add_u32 v3, v8, 4, v4")
    a("v_add_u32 v3, 7168, v3")
    a("s_waitcnt lgkmcnt(0)")
    srd(a, 32, 4, 2048*1024)
    a("s_cmp_eq_u32 s22, 0")
    a("s_cselect_b32 s36, s6, s8")
    a("s_cselect_b32 s37, s7, s9")
    a("s_and_b32 s37, s37, 0xffff")
    a(f"s_cselect_b32 s38, {512*3072}, {512*2752}".replace(f"{512*3072}, {512*2752}", "s40, s41") if False else "s_nop 0")
    a(f"s_mov_b32 s40, {512*3072}")
    a(f"s_mov_b32 s41, {512*2752}")
    a("s_cmp_eq_u32 s22, 0")
    a("s_cselect_b32 s38, s40, s41")
    a("s_mov_b32 s39, 0x00020000")
    a("s_movk_i32 s40, 3072")
    a("s_movk_i32 s41, 2752")
    a("s_cselect_b32 s42, s40, s41")
    a("s_movk_i32 s40, 1024")
    a("s_movk_i32 s41, 128")
    a("s_cselect_b32 s43, s40, s41")
    a("s_lshl_b32 s40, s23, 7")
    a("s_lshl_b32 s41, s25, 6")
    a("s_cmp_eq_u32 s22, 0")
    a("s_cselect_b32 s44, s40, s41")
    a("s_mov_b32 s45, 0")
    a("s_mov_b32 s46, 0")
    a("s_mov_b32 s47, 0")
    a("s_lshl_b32 s48, s24, 12")
    a("s_mul_i32 s49, s24, 6144")
    a("s_add_u32 s49, s49, 16384")
    a("s_lshl_b32 s50, s42, 3")
    a("s_lshl_b32 s51, s42, 6")
    a("s_mov_b64 s[52:53], -1")
    a("s_mov_b64 s[54:55], -1")
    a("s_cmp_eq_u32 s27, 0")
    a("s_cselect_b32 s52, -1, 0xffff")
    a("s_cselect_b32 s55, -1, 0xffff")
    a("v_and_b32 v6, 15, v1")
    a("v_lshrrev_b32 v6, 2, v6")
    a("s_lshl_b32 s30, s24, 4")
    a("v_add_u32 v6, s30, v6")
    a("v_and_b32 v7, 3, v1")
    a("v_lshlrev_b32 v7, 4, v7")
    a("v_add_u32 v7, s44, v7")
    for j in range(3):
        a(f"v_add_u32 v13, {4*j}, v5")
        a("v_mul_u32_u24 v14, 43, v13")
        a("v_lshrrev_b32 v14, 8, v14")
        a("v_mul_u32_u24 v15, 6, v14")
        a("v_sub_u32 v15, v13, v15")
        a("v_lshl_add_u32 v14, v14, 2, v6")
        a("v_mul_lo_u32 v14, v14, s42")
        a("v_lshrrev_b32 v16, 1, v15")
        a("v_mul_lo_u32 v16, v16, s43")
        a("v_and_b32 v15, 1, v15")
        a("v_lshlrev_b32 v15, 6, v15")
        a("v_add3_u32 v14, v14, v16, v15")
        a(f"v_add_u32 v{10+j}, v14, v7")
    a("s_cmp_eq_u32 s24, 0")
    a("s_cselect_b32 s28, s28, 0")
    a("s_cmp_eq_u32 s28, 0")
    a("s_cbranch_scc1 K1_L_NOGATE")
    srd(a, 56, 12, 1024)
    a("v_lshlrev_b32 v29, 1, v1")
    for t in range(8):
        a(f"buffer_load_ushort v{20+t}, v29, s[56:59], 0 offen offset:{128*t}")
    a("v_lshrrev_b32 v28, 2, v1")
    a("v_mul_u32_u24 v28, 1536, v28")
    a("v_and_b32 v29, 3, v1")
    a("v_lshl_add_u32 v28, v29, 6, v28")
    a(f"v_add_u32 v28, {16384 + 5*256}, v28")
    a.label("K1_L_NOGATE")

    def issue_tile():
        a("s_add_u32 m0, s47, s48")
        a(f"s_add_u32 s60, s45, {16384-2048}")
        a("buffer_load_dwordx4 v2, s[32:35], s45 offen lds")
        a("buffer_load_dwordx4 v3, s[32:35], s45 offen offset:1024 lds")
        a("buffer_load_dwordx4 v2, s[32:35], s60 offen offset:2048 lds")
        a("buffer_load_dwordx4 v3, s[32:35], s60 offen offset:3072 lds")
        a("s_add_u32 m0, s47, s49")
        a("s_add_u32 s61, s46, s50")
        for j in range(6):
            so = "s46" if j < 3 else "s61"
            if j > 0:
                a("s_add_u32 m0, m0, 1024")
            if j % 3 == 0:
                a("s_mov_b64 exec, -1")
            elif j % 3 == 1:
                a("s_mov_b64 exec, s[52:53]")
            else:
                a("s_mov_b64 exec, s[54:55]")
            a(f"buffer_load_dwordx4 v{10 + j%3}, s[36:39], {so} offen lds")
        a("s_mov_b64 exec, -1")
        a("s_add_u32 s45, s45, 128")
        a("s_add_u32 s46, s46, s51")
        a(f"s_add_u32 s47, s47, {STAGE}")
        a(f"s_cmp_eq_u32 s47, {4*STAGE}")
        a("s_cselect_b32 s47, 0, s47")

    a("s_mov_b32 s62, 0")
    a.label("K1_L_PRO")
    issue_tile()
    a("s_add_u32 s62, s62, 1")
    a("s_cmp_lt_u32 s62, 4")
    a("s_cbranch_scc1 K1_L_PRO")
    waits = [30, 20, 20, 20, 20, 20, 10, 0]
    for t in range(8):
        a(f"s_waitcnt vmcnt({waits[t]})")
        lab = a.newlabel("K1_L_NG")
        a("s_cmp_eq_u32 s28, 0")
        a(f"s_cbranch_scc1 {lab}")
        a(f"ds_write_b16 v28, v{20+t} offset:{(t%4)*STAGE if (t%4)*STAGE < 65536 else 0}") if (t % 4) < 2 else None
        if (t % 4) >= 2:
            a(f"v_add_u32 v29, {(t%4)*STAGE}, v28")
            a(f"ds_write_b16 v29, v{20+t}")
        a("s_waitcnt lgkmcnt(0)")
        a.label(lab)
        a("s_barrier")
        if 1 <= t <= 4:
            issue_tile()
    a("s_barrier")
    a("s_endpgm")

    a.label("K1_CONSUMER")
    a("s_lshr_b32 s29, s24, 1")
    a("s_and_b32 s30, s24, 1")
    ACC = 32
    def acc(u, rg): return ACC + (u*2+rg)*16
    FR = 128
    def xf(p, rg): return FR + 20*p + 4*rg
    def wf(p, u): return FR + 20*p + 8 + 4*u
    a("v_and_b32 v8, 31, v1")
    a("v_lshrrev_b32 v9, 5, v1")
    a("v_lshrrev_b32 v10, 1, v8")
    a("v_and_b32 v10, 7, v10")
    a("v_xor_b32 v10, v10, v9")
    a("s_lshl_b32 s31, s29, 6")
    a("v_add_u32 v11, s31, v8")
    a("v_lshlrev_b32 v11, 7, v11")
    a("v_lshl_add_u32 v2, v10, 4, v11")
    a("v_xor_b32 v3, 32, v2")
    a("v_xor_b32 v4, 64, v2")
    a("v_xor_b32 v5, 96, v2")
    a("v_mul_u32_u24 v6, 3072, v9")
    a("v_and_b32 v10, 15, v1")
    a("v_lshrrev_b32 v10, 2, v10")
    a("v_lshl_add_u32 v6, v10, 6, v6")
    a("v_bfe_u32 v10, v1, 4, 1")
    a("v_lshl_add_u32 v6, v10, 5, v6")
    a("v_and_b32 v10, 3, v1")
    a("v_lshl_add_u32 v6, v10, 3, v6")
    a("s_lshl_b32 s31, s30, 8")
    a("s_add_u32 s31, s31, 16384")
    a("v_add_u32 v6, s31, v6")
    a("s_waitcnt lgkmcnt(0)")
    srd(a, 32, 14, WS_BYTES)
    a("s_lshl_b32 s40, s20, 2")
    a("s_lshl_b32 s41, s29, 1")
    a("s_add_u32 s40, s40, s41")
    a("s_mov_b32 s47, 0")
    a("s_mov_b32 s62, 0")
    a("s_cmp_eq_u32 s22, 0")
    a("s_cbranch_scc0 K1_C_W1")

    def reads(p, sidx):
        r = []
        r.append(f"ds_read_b128 {v(xf(p,0),4)}, v{2+sidx}")
        for rr in range(2):
            r.append(f"ds_read_b64_tr_b16 {v(wf(p,0)+2*rr,2)}, v6 offset:{(4*sidx+rr)*1536}")
        r.append(f"ds_read_b128 {v(xf(p,1),4)}, v{2+sidx} offset:4096")
        for u in (1, 2):
            for rr in range(2):
                r.append(f"ds_read_b64_tr_b16 {v(wf(p,u)+2*rr,2)}, v6 offset:{(4*sidx+rr)*1536 + u*512}")
        return r

    def mfmas(p, vmode):
        m = []
        for u in range(3):
            for rg in range(2):
                A, B = v(wf(p,u),4), v(xf(p,rg),4)
                if vmode and u == 2:
                    A, B = B, A
                m.append(f"v_mfma_f32_32x32x16_bf16 {v(acc(u,rg),16)}, {A}, {B}, {v(acc(u,rg),16)}")
        return m
    need = [3, 4, 6, 6, 8, 8]

    def kstep(p, nxt_reads, vmode, pre=None):
        m = mfmas(p, vmode)
        issued = 0
        for i in range(6):
            if pre is None:
                if i == 0 or need[i] != need[i-1]:
                    a(f"s_waitcnt lgkmcnt({min(15, 8 - need[i] + issued)})")
            a(m[i])
            if i < 4:
                a(nxt_reads[2*i]); a(nxt_reads[2*i+1]); issued += 2

    def mainloop(tag, vmode):
        a("s_barrier")
        for r in reads(0, 0): a(r)
        a.label(f"K1_C_LOOP_{tag}")
        kstep(0, reads(1, 1), vmode)
        kstep(1, reads(0, 2), vmode)
        kstep(0, reads(1, 3), vmode)
        a("s_add_u32 s47, s47, 1")
        a("s_cmp_eq_u32 s47, 4")
        a(f"s_cselect_b32 s46, {(-3*STAGE) & 0xffffffff}, s45")
        a("s_cselect_b32 s47, 0, s47")
        a("s_waitcnt lgkmcnt(0)")
        a("s_barrier")
        for i in range(2, 7):
            a(f"v_add_u32 v{i}, s46, v{i}")
        kstep(1, reads(0, 0), vmode, pre=True)
        a("s_add_u32 s62, s62, 1")
        a("s_cmp_lt_u32 s62, 8")
        a(f"s_cbranch_scc1 K1_C_LOOP_{tag}")
        a("s_waitcnt lgkmcnt(0)")
        a("s_nop 15")

    for i in range(96):
        a(f"v_mov_b32 v{ACC+i}, 0")
    a(f"s_mov_b32 s45, {STAGE}")
    mainloop("QKV", True)
    a(f"v_mov_b32 v10, {hexf(QSCALE)}")
    a(f"v_mov_b32 v11, {hexf(QSCALE)}")
    a("v_lshlrev_b32 v12, 4, v1")
    a("s_lshl_b32 s41, s23, 2")
    a("s_lshl_b32 s42, s30, 1")
    a("s_add_u32 s41, s41, s42")
    a("s_lshl_b32 s41, s41, 6")
    a("s_add_u32 s41, s41, s40")
    a("s_lshl_b32 s41, s41, 10")
    a("v_bfe_u32 v13, v1, 4, 1")
    a("v_lshlrev_b32 v13, 16, v13")
    a("v_lshl_add_u32 v13, v9, 8, v13")
    a("v_and_b32 v14, 15, v1")
    a("v_lshl_add_u32 v13, v14, 4, v13")
    T = 168
    for u in range(3):
        for rg in range(2):
            b = acc(u, rg)
            t = T + ((u*2+rg) % 2) * 8
            if u == 0:
                for i in range(0, 16, 2):
                    a(f"v_pk_mul_f32 {v(b+i,2)}, {v(b+i,2)}, v[10:11]")
            for i in range(8):
                a(f"v_cvt_pk_bf16_f32 v{t+i}, v{b+2*i}, v{b+2*i+1}")
            base = [WS_Q, WS_K, WS_V][u]
            if u < 2:
                a(f"s_add_u32 s42, s41, {base + rg*1024}")
                a(f"s_add_u32 s43, s41, {base + rg*1024 + 65536}")
                a(f"buffer_store_dwordx4 {v(t,4)}, v12, s[32:35], s42 offen")
                a(f"buffer_store_dwordx4 {v(t+4,4)}, v12, s[32:35], s43 offen")
            else:
                a(f"s_add_u32 s42, s41, {base + rg*1024}")
                a(f"buffer_store_dwordx4 {v(t,4)}, v13, s[32:35], s42 offen")
                a(f"buffer_store_dwordx4 {v(t+4,4)}, v13, s[32:35], s42 offen offset:512")
    a("s_endpgm")

    a.label("K1_C_W1")
    srd(a, 36, 10, 1376*2)
    a("s_add_u32 s41, s25, s30")
    a("s_lshl_b32 s42, s41, 6")
    a("v_lshlrev_b32 v10, 3, v9")
    for u in range(3):
        for j in range(4):
            a(f"buffer_load_dwordx2 {v(T + (u*4+j)*2, 2)}, v10, s[36:39], s42 offen offset:{u*128 + j*16}")
    a("s_waitcnt vmcnt(0)")
    for u in range(3):
        for j in range(4):
            for d in range(2):
                src = T + (u*4+j)*2 + d
                for rg in range(2):
                    a(f"v_lshlrev_b32 v{acc(u,rg)+4*j+2*d}, 16, v{src}")
                    a(f"v_and_b32 v{acc(u,rg)+4*j+2*d+1}, 0xffff0000, v{src}")
    a(f"s_mov_b32 s45, {STAGE}")
    mainloop("W1", False)
    a(f"v_mov_b32 v10, {hexf(LOG2E)}")
    a(f"v_mov_b32 v11, {hexf(LOG2E)}")
    a("v_mov_b32 v14, 2.0")
    a("v_mov_b32 v15, 2.0")
    a("v_lshlrev_b32 v12, 4, v1")
    a(f"s_mul_i32 s42, s40, {NKS}")
    a("s_lshl_b32 s43, s41, 1")
    a("s_add_u32 s42, s42, s43")
    a("s_lshl_b32 s42, s42, 10")
    a(f"s_add_u32 s42, s42, {WS_A3}")
    a("s_and_b32 s27, s27, s30")
    def mish_tile(b, t):
        for q in range(4):
            h0, h1 = b + 4*q, b + 4*q + 2
            y0, y1, e0, e1, u0, u1 = 16, 18, 20, 22, 24, 26
            a(f"v_pk_mul_f32 {v(y0,2)}, {v(h0,2)}, v[10:11]")
            a(f"v_pk_mul_f32 {v(y1,2)}, {v(h1,2)}, v[10:11]")
            for r in (y0, y0+1, y1, y1+1):
                a(f"v_min_f32 v{r}, 0x41f00000, v{r}")
            for k in range(4):
                a(f"v_exp_f32 v{e0+k}, v{y0+k}")
            a(f"v_pk_add_f32 {v(u0,2)}, {v(e0,2)}, v[14:15]")
            a(f"v_pk_add_f32 {v(u1,2)}, {v(e1,2)}, v[14:15]")
            a(f"v_pk_mul_f32 {v(e0,2)}, {v(e0,2)}, {v(u0,2)}")
            a(f"v_pk_mul_f32 {v(e1,2)}, {v(e1,2)}, {v(u1,2)}")
            a(f"v_pk_add_f32 {v(u0,2)}, {v(e0,2)}, v[14:15]")
            a(f"v_pk_add_f32 {v(u1,2)}, {v(e1,2)}, v[14:15]")
            for k in range(4):
                a(f"v_rcp_f32 v{y0+k}, v{u0+k}")
            a("s_nop 0")
            a(f"v_pk_mul_f32 {v(e0,2)}, {v(e0,2)}, {v(y0,2)}")
            a(f"v_pk_mul_f32 {v(e1,2)}, {v(e1,2)}, {v(y1,2)}")
            a(f"v_pk_mul_f32 {v(e0,2)}, {v(e0,2)}, {v(h0,2)}")
            a(f"v_pk_mul_f32 {v(e1,2)}, {v(e1,2)}, {v(h1,2)}")
            a(f"v_cvt_pk_bf16_f32 v{t+2*q}, v{e0}, v{e0+1}")
            a(f"v_cvt_pk_bf16_f32 v{t+2*q+1}, v{e1}, v{e1+1}")
    for u in range(3):
        if u == 2:
            a("s_cmp_lg_u32 s27, 0")
            a("s_cbranch_scc1 K1_C_GATE")
        for rg in range(2):
            t = T + ((u*2+rg) % 2) * 8
            mish_tile(acc(u, rg), t)
            a(f"s_add_u32 s43, s42, {(rg*NKS + 4*u)*1024}")
            a(f"buffer_store_dwordx4 {v(t,4)}, v12, s[32:35], s43 offen")
            a(f"buffer_store_dwordx4 {v(t+4,4)}, v12, s[32:35], s43 offen offset:1024")
    a("s_endpgm")
    a.label("K1_C_GATE")
    a("s_cmp_eq_u32 s28, 0")
    a("s_cbranch_scc1 K1_END")
    for rg in range(2):
        z = acc(2, rg)
        a(f"v_mul_f32 v16, {hexf(-LOG2E)}, v{z}")
        a("v_min_f32 v16, 0x42fc0000, v16")
        a("v_exp_f32 v16, v16")
        a("s_nop 0")
        a("v_add_f32 v16, 1.0, v16")
        a("v_rcp_f32 v16, v16")
        a("v_lshlrev_b32 v17, 2, v1")
        a("s_lshl_b32 s43, s40, 7")
        a(f"s_add_u32 s43, s43, {WS_G + rg*128}")
        a("s_mov_b32 exec_hi, 0")
        a("buffer_store_dword v16, v17, s[32:35], s43 offen")
        a("s_mov_b64 exec, -1")
        a("s_nop 1")
    a.label("K1_END")
    a("s_endpgm")

def gen_k2(a):
    K = "p2_kernel"
    a.raw(f".globl {K}\n.p2align 8\n.type {K},@function")
    a.label(K)
    a("s_cmp_ge_u32 s2, 256")
    a("s_cbranch_scc1 K2_END")
    a("s_load_dwordx2 s[14:15], s[0:1], 80")
    a("v_lshrrev_b32 v2, 6, v0")
    a("v_and_b32 v1, 63, v0")
    a("s_and_b32 s16, s2, 7")
    a("s_lshl_b32 s16, s16, 2")
    a("v_readfirstlane_b32 s24, v2")
    a("s_bfe_u32 s17, s2, 0x20003")
    a("s_add_u32 s16, s16, s17")
    a("s_lshr_b32 s17, s2, 5")
    a("s_lshl_b32 s18, s17, 3")
    a("s_lshl_b32 s19, s24, 1")
    a("s_add_u32 s18, s18, s19")
    a("s_sub_i32 s19, 8, s18")
    a("v_lshlrev_b32 v2, 4, v1")
    a("v_lshrrev_b32 v9, 5, v1")
    a("v_and_b32 v8, 31, v1")
    a("v_and_b32 v3, 15, v1")
    a("v_lshlrev_b32 v3, 4, v3")
    a("v_lshl_add_u32 v3, v9, 8, v3")
    KF, VF, QF = 16, 56, 136
    S0, S1, SM, CM, OA, P0, P1, MK = 144, 160, 176, 192, 208, 224, 232, 240
    for i in range(80):
        a(f"v_mov_b32 v{VF+i}, 0x3f803f80")
    a("s_waitcnt lgkmcnt(0)")
    srd(a, 32, 14, WS_BYTES)
    a("s_lshl_b32 s20, s16, 16")
    a("s_lshl_b32 s21, s18, 10")
    a("s_add_u32 s21, s21, s20")
    a(f"buffer_load_dwordx4 {v(QF,4)}, v2, s[32:35], s21 offen")
    a(f"buffer_load_dwordx4 {v(QF+4,4)}, v2, s[32:35], s21 offen offset:1024")
    for i in range(10):
        a(f"s_add_i32 s22, s18, {i-8}")
        a("s_max_i32 s22, s22, 0")
        a("s_lshl_b32 s22, s22, 10")
        a(f"s_add_u32 s{40+i}, s22, s20")
    order = [1,2,3,4,5,6,7,8,0,9]
    for i in order:
        a(f"s_add_u32 s22, s{40+i}, {WS_K}")
        a(f"buffer_load_dwordx4 {v(KF+4*i,4)}, v2, s[32:35], s22 offen")
    a("s_mov_b32 s22, 0xffff")
    a("s_mov_b32 s23, 0xffff")
    a("s_mov_b64 exec, s[22:23]")
    for i in order:
        a(f"s_add_u32 s22, s{40+i}, {WS_V}")
        a(f"buffer_load_dwordx4 {v(VF+8*i,4)}, v3, s[32:35], s22 offen")
        a(f"buffer_load_dwordx4 {v(VF+8*i+4,4)}, v3, s[32:35], s22 offen offset:512")
    a("s_mov_b64 exec, -1")
    a("v_lshlrev_b32 v4, 2, v9")
    a("v_sub_u32 v4, v8, v4")
    for i in range(16):
        c = 8*(i//4) + (i % 4)
        a(f"v_cmp_le_i32 s[{64+2*i}:{65+2*i}], {c}, v4")
    a("v_mov_b32 v5, 0xffff")
    a("v_mov_b32 v6, 0xffff0000")
    a("s_nop 1")
    for p in range(8):
        a(f"v_cndmask_b32 v10, 0, v5, s[{64+4*p}:{65+4*p}]")
        a(f"v_cndmask_b32 v11, 0, v6, s[{66+4*p}:{67+4*p}]")
        a(f"v_or_b32 v{MK+p}, v10, v11")
    a("s_waitcnt vmcnt(0)")
    NEG = hexf(-1.0e30)
    def qblock(o):
        Q = v(QF+4*o, 4)
        Sb = [S0, S1]
        def smfma(dst, i, C):
            a(f"v_mfma_f32_32x32x16_bf16 {v(dst,16)}, {v(KF+4*i,4)}, {Q}, {C}")
        full = list(range(o+1, o+8))
        far, diag = o, o+8
        a(f"v_mov_b32 v4, {NEG}")
        smfma(SM, diag, "0")
        smfma(CM, far, "0")
        smfma(Sb[0], full[0], "0")
        a("s_nop 7")
        lab = a.newlabel("K2_FARV")
        a(f"s_cmp_ge_i32 {far}, s19")
        a(f"s_cbranch_scc1 {lab}")
        a("s_nop 7")
        for i in range(16):
            a(f"v_mov_b32 v{CM+i}, {NEG}")
        a.label(lab)
        a("s_nop 3")
        for i in range(16):
            a(f"v_cndmask_b32 v{SM+i}, v{CM+i}, v{SM+i}, s[{64+2*i}:{65+2*i}]")
        for i in range(0, 16, 2):
            a(f"v_max3_f32 v4, v4, v{SM+i}, v{SM+i+1}")
        for n, i in enumerate(full):
            cur = Sb[n % 2]
            if n + 1 < len(full):
                smfma(Sb[(n+1) % 2], full[n+1], "0")
            lab = a.newlabel("K2_S1")
            a(f"s_cmp_lt_i32 {i}, s19")
            a(f"s_cbranch_scc1 {lab}")
            for k in range(0, 16, 2):
                a(f"v_max3_f32 v4, v4, v{cur+k}, v{cur+k+1}")
            a.label(lab)
            a("s_nop 7")
        a("v_mov_b32 v5, v4")
        a("s_nop 1")
        a("v_permlane32_swap_b32 v4, v5")
        a("s_nop 1")
        a("v_max_f32 v4, v4, v5")
        a("v_sub_f32 v4, 0, v4")
        for i in range(16):
            a(f"v_mov_b32 v{CM+i}, v4")
        for i in range(16):
            a(f"v_mov_b32 v{OA+i}, 0")
        C = v(CM, 16)
        smfma(Sb[0], full[0], C)
        for i in range(16):
            a(f"v_add_f32 v{SM+i}, v{SM+i}, v4")
        for i in range(16):
            a(f"v_exp_f32 v{SM+i}, v{SM+i}")
        a("s_nop 0")
        for p in range(8):
            a(f"v_cvt_pk_bf16_f32 v{P1+p}, v{SM+2*p}, v{SM+2*p+1}")
        for p in range(8):
            a(f"v_and_b32 v{P0+p}, v{P1+p}, v{MK+p}")
        for p in range(8):
            a(f"v_xor_b32 v{P1+p}, v{P1+p}, v{P0+p}")
        def pv(i, P):
            for m in range(2):
                a(f"v_mfma_f32_32x32x16_bf16 {v(OA,16)}, {v(VF+8*i+4*m,4)}, {v(P+4*m,4)}, {v(OA,16)}")
        a("s_nop 1")
        pv(diag, P0)
        pv(far, P1)
        for n, i in enumerate(full):
            cur = Sb[n % 2]
            P = [P0, P1][n % 2]
            if n + 1 < len(full):
                smfma(Sb[(n+1) % 2], full[n+1], C)
            lab = a.newlabel("K2_S2")
            a(f"s_cmp_lt_i32 {i}, s19")
            a(f"s_cbranch_scc1 {lab}")
            for k in range(16):
                a(f"v_exp_f32 v{cur+k}, v{cur+k}")
            a("s_nop 0")
            for p in range(8):
                a(f"v_cvt_pk_bf16_f32 v{P+p}, v{cur+2*p}, v{cur+2*p+1}")
            a("s_nop 1")
            pv(i, P)
            a.label(lab)
            a("s_nop 7")
        a("s_nop 7")
        a(f"v_rcp_f32 v5, v{OA+8}")
        a("s_nop 0")
        for i in range(8):
            a(f"v_mul_f32 v{OA+i}, v{OA+i}, v5")
        for p in range(4):
            a(f"v_cvt_pk_bf16_f32 v{P0+p}, v{OA+2*p}, v{OA+2*p+1}")
        a(f"s_add_u32 s22, s18, {o}")
        a(f"s_mul_i32 s22, s22, {NKS}")
        a("s_add_u32 s22, s22, s16")
        a("s_lshl_b32 s22, s22, 10")
        a(f"s_add_u32 s22, s22, {WS_A3 + 86*1024}")
        a(f"buffer_store_dwordx4 {v(P0,4)}, v2, s[32:35], s22 offen")
        a("s_nop 1")
    qblock(0)
    qblock(1)
    a.label("K2_END")
    a("s_endpgm")

def gen_k3(a):
    K = "p3_kernel"
    D = 6
    a.raw(f".globl {K}\n.p2align 8\n.type {K},@function")
    a.label(K)
    a("s_cmp_ge_u32 s2, 256")
    a("s_cbranch_scc1 K3_END")
    a("s_load_dwordx2 s[4:5], s[0:1], 16")
    a("s_load_dwordx2 s[6:7], s[0:1], 48")
    a("s_load_dwordx2 s[8:9], s[0:1], 64")
    a("s_load_dwordx2 s[14:15], s[0:1], 80")
    a("v_lshrrev_b32 v2, 6, v0")
    a("v_and_b32 v1, 63, v0")
    a("s_and_b32 s16, s2, 7")
    a("s_lshl_b32 s16, s16, 2")
    a("v_readfirstlane_b32 s24, v2")
    a("s_bfe_u32 s17, s2, 0x20003")
    a("s_add_u32 s16, s16, s17")
    a("s_lshr_b32 s17, s2, 5")
    a("v_lshlrev_b32 v2, 4, v1")
    a(f"v_add_u32 v3, {NKS*1024}, v2")
    a("v_lshrrev_b32 v9, 5, v1")
    a("v_and_b32 v10, 15, v1")
    a("v_lshrrev_b32 v10, 2, v10")
    a("v_lshl_add_u32 v10, v9, 2, v10")
    a("v_lshlrev_b32 v4, 10, v10")
    a("v_bfe_u32 v10, v1, 4, 1")
    a("v_lshl_add_u32 v4, v10, 6, v4")
    a("v_and_b32 v10, 3, v1")
    a("v_lshl_add_u32 v4, v10, 4, v4")
    a("s_lshl_b32 s18, s17, 7")
    a("v_add_u32 v4, s18, v4")
    a(f"v_add_u32 v5, {8192-1024}, v4")
    a("v_lshlrev_b32 v6, 9, v9")
    a("v_and_b32 v10, 15, v1")
    a("v_lshrrev_b32 v10, 2, v10")
    a("v_lshl_add_u32 v6, v10, 6, v6")
    a("v_bfe_u32 v10, v1, 4, 1")
    a("v_lshl_add_u32 v6, v10, 5, v6")
    a("v_and_b32 v10, 3, v1")
    a("v_lshl_add_u32 v6, v10, 3, v6")
    a(f"s_mul_i32 s19, s24, {D*2048}")
    a("v_add_u32 v6, s19, v6")
    ACB, ACA, AR, BF = 16, 80, 144, 144 + 8*D
    for i in range(128):
        a(f"v_mov_b32 v{ACB+i}, 0")
    a("s_waitcnt lgkmcnt(0)")
    srd(a, 32, 14, WS_BYTES)
    srd(a, 36, 6, 1376*1024)
    srd(a, 40, 4, 512*1024)
    srd(a, 44, 8, 2048*1024)
    a("v_and_b32 v8, 31, v1")
    a("v_lshlrev_b32 v10, 2, v8")
    a("s_lshl_b32 s20, s16, 8")
    a(f"s_add_u32 s20, s20, {WS_G}")
    a("buffer_load_dword v12, v10, s[32:35], s20 offen")
    a("buffer_load_dword v13, v10, s[32:35], s20 offen offset:128")
    a(f"s_mul_i32 s20, s16, {2*NKS}")
    a("s_add_u32 s20, s20, s24")
    a("s_lshl_b32 s20, s20, 10")
    a(f"s_add_u32 s20, s20, {WS_A3}")
    a("s_lshl_b32 s21, s24, 14")
    NS = 30
    def issue(n):
        slot = n % D
        if n < 22:
            aoff, boff, bs = n*4096, n*65536, "s[36:39]"
        else:
            aoff, boff, bs = (86 + 4*(n-22))*1024, (n-22)*65536, "s[40:43]"
        a(f"s_add_u32 s22, s20, {aoff}")
        a(f"s_add_u32 s23, s21, {boff}")
        a(f"s_add_u32 m0, s19, {slot*2048}")
        a(f"buffer_load_dwordx4 {v(AR+8*slot,4)}, v2, s[32:35], s22 offen")
        a(f"buffer_load_dwordx4 {v(AR+8*slot+4,4)}, v3, s[32:35], s22 offen")
        a(f"buffer_load_dwordx4 v4, {bs}, s23 offen lds")
        a(f"buffer_load_dwordx4 v5, {bs}, s23 offen offset:1024 lds")
    for n in range(D):
        issue(n)
    for n in range(NS):
        slot = n % D
        outstanding_after = min(NS, n + D) - (n + 1)
        a(f"s_waitcnt vmcnt({4*outstanding_after})")
        bf = BF + 8*(n % 2)
        for u in range(2):
            for r in range(2):
                a(f"ds_read_b64_tr_b16 {v(bf+4*u+2*r,2)}, v6 offset:{slot*2048 + r*1024 + u*256}")
        skip = None
        if n == 21:
            skip = a.newlabel("K3_SKIP")
            a("s_cmp_ge_u32 s24, 2")
            a(f"s_cbranch_scc1 {skip}")
        AC = ACB if n < 22 else ACA
        for u in range(2):
            a(f"s_waitcnt lgkmcnt({2 if u == 0 else 0})")
            for rg in range(2):
                d = AC + (rg*2+u)*16
                a(f"v_mfma_f32_32x32x16_bf16 {v(d,16)}, {v(bf+4*u,4)}, {v(AR+8*slot+4*rg,4)}, {v(d,16)}")
        if skip:
            a.label(skip)
            a("s_waitcnt lgkmcnt(0)")
        if n + D < NS:
            issue(n + D)
    a("s_nop 15")
    a("v_sub_f32 v14, 1.0, v12")
    a("v_sub_f32 v15, 1.0, v13")
    for rg in range(2):
        for i in range(32):
            b, aa = ACB + rg*32 + i, ACA + rg*32 + i
            a(f"v_mul_f32 v{b}, v{b}, v{14+rg}")
            a(f"v_fmac_f32 v{b}, v{aa}, v{12+rg}")
    a("s_barrier")
    PITCH = 272
    a(f"s_mul_i32 s22, s24, {64*PITCH}")
    a(f"v_mul_u32_u24 v10, {PITCH}, v8")
    a("v_lshl_add_u32 v10, v9, 4, v10")
    a("v_add_u32 v10, s22, v10")
    for rg in range(2):
        for u in range(2):
            for j in range(4):
                r = ACB + (rg*2+u)*16 + 4*j
                a(f"ds_write_b128 v10, {v(r,4)} offset:{rg*32*PITCH + (32*u+8*j)*4}")
    a("s_waitcnt lgkmcnt(0)")
    a("s_barrier")
    a("v_lshrrev_b32 v10, 3, v1")
    a("s_lshl_b32 s22, s24, 4")
    a("v_add_u32 v10, s22, v10")
    a("v_and_b32 v11, 7, v1")
    a(f"v_mul_u32_u24 v12, {PITCH}, v10")
    a("v_lshl_add_u32 v12, v11, 5, v12")
    a("v_lshlrev_b32 v13, 10, v10")
    a("v_lshl_add_u32 v13, v11, 4, v13")
    a("s_lshl_b32 s22, s16, 16")
    a("s_add_u32 s22, s22, s18")
    a("s_add_u32 s23, s22, 8192")
    R = 16
    for ps in range(2):
        for w in range(4):
            for hh in range(2):
                a(f"ds_read_b128 {v(R + ps*32 + w*8 + hh*4, 4)}, v12 offset:{w*64*PITCH + ps*8*PITCH + hh*16}")
    for ps in range(2):
        a(f"s_waitcnt lgkmcnt({8 if ps == 0 else 0})")
        b = R + ps*32
        for i in range(8):
            a(f"v_add_f32 v{b+i}, v{b+i}, v{b+8+i}")
            a(f"v_add_f32 v{b+16+i}, v{b+16+i}, v{b+24+i}")
        for i in range(8):
            a(f"v_add_f32 v{b+i}, v{b+i}, v{b+16+i}")
        for p in range(4):
            a(f"v_cvt_pk_bf16_f32 v{b+8+p}, v{b+2*p}, v{b+2*p+1}")
        a(f"buffer_store_dwordx4 {v(b+8,4)}, v13, s[44:47], s{22+ps} offen")
    a.label("K3_END")
    a("s_endpgm")

def main():
    a = Asm()
    hdr = open("cdna_kernels/" + NAME + ".s.ref").read().split("\n")
    hdr = [l for l in hdr if l.startswith(";") and "@launch" not in l]
    for l in hdr: a.raw(l)
    a.raw("; @launch kernel=p1_kernel grid=(256,1,1) block=(512,1,1) lds=163840")
    a.raw("; @launch kernel=p2_kernel grid=(256,1,1) block=(256,1,1) lds=0")
    a.raw("; @launch kernel=p3_kernel grid=(256,1,1) block=(256,1,1) lds=69632")
    a.raw('.amdgcn_target "amdgcn-amd-amdhsa--gfx950"')
    a.raw(".text")
    gen_k1(a); gen_k2(a); gen_k3(a)
    a.raw(kernel_desc("p1_kernel", 256))
    a.raw(kernel_desc("p2_kernel", 256))
    a.raw(kernel_desc("p3_kernel", 256))
    out = sys.argv[1] if len(sys.argv) > 1 else "cdna_kernels/" + NAME + ".s"
    open(out, "w").write(a.text())

main()
```

```python
import math, sys, os
from asmlib import *

NAME = "gated_mix__sliding_block__dense_activation_mish__prompt"
KNAME = NAME + "_kernel"
WS_Q, WS_K, WS_V, WS_A3, WS_G = 0x0, 0x200000, 0x400000, 0x600000, 0xE00000
WS_FQ, WS_FA, WS_FO = 0xE10000, 0xE11000, 0xE12000
WS_DBG = 0xF00000
WS_BYTES = 0x1000000
NKS = 118
LOG2E = 1.4426950408889634
QSCALE = 0.25 * LOG2E
STAGE = 40960
DBG = os.environ.get("DBG", "0") == "1"
SPIN_MAX = 200000

S_X, S_WQKV, S_WO, S_BX, S_W1, S_B1, S_W2, S_GATE = 4, 6, 8, 10, 12, 14, 16, 18
S_OUT, S_DBG, S_WS = 20, 22, 24
S_WAVE = 26
SRD_WS = 28

def srd(a, d, base, nbytes):
    a(f"s_mov_b32 s{d}, s{base}")
    a(f"s_and_b32 s{d+1}, s{base+1}, 0xffff")
    a(f"s_mov_b32 s{d+2}, {nbytes}")
    a(f"s_mov_b32 s{d+3}, 0x00020000")

def stamp(a, idx, rt=False):
    if not DBG: return
    a(f"s_mem{'real' if rt else ''}time s[100:101]")
    a("s_waitcnt lgkmcnt(0)")
    a(f"v_writelane_b32 v255, s100, {idx}")

def stamp_out(a):
    if not DBG: return
    a("s_mov_b64 exec, -1")
    a("s_lshl_b32 s99, s2, 3")
    a(f"s_add_u32 s99, s99, s{S_WAVE}")
    a("s_lshl_b32 s99, s99, 8")
    a(f"s_add_u32 s99, s99, {WS_DBG}")
    a("v_mbcnt_lo_u32_b32 v254, -1, 0")
    a("v_mbcnt_hi_u32_b32 v254, -1, v254")
    a("v_lshlrev_b32 v254, 2, v254")
    a(f"buffer_store_dword v255, v254, s[{SRD_WS}:{SRD_WS+3}], s99 offen")

class VM:
    def __init__(self): self.n = 0; self.tags = {}
    def issue(self, tag=None):
        self.n += 1
        if tag is not None: self.tags[tag] = self.n
    def wait_for(self, a, *tags):
        last = max(self.tags[t] for t in tags)
        a(f"s_waitcnt vmcnt({min(63, self.n - last)})")

def poll(a, vaddr, srdreg, soff, lanes_mask_lo, expect_v, tmpv, label, cmp="eq"):
    a(f"s_mov_b32 s96, 0")
    a(f"s_mov_b32 exec_lo, {lanes_mask_lo}")
    a(f"s_mov_b32 exec_hi, {'-1' if lanes_mask_lo == '-1' else 0}")
    a.label(label)
    a(f"buffer_load_dword v{tmpv}, v{vaddr}, s[{srdreg}:{srdreg+3}], {soff} offen sc1")
    a("s_add_u32 s96, s96, 1")
    a("s_waitcnt vmcnt(0)")
    a(f"v_cmp_ne_u32 vcc, v{tmpv}, v{expect_v}")
    a(f"s_cmp_ge_u32 s96, {SPIN_MAX}")
    a(f"s_cbranch_scc1 {label}_X")
    a(f"s_cbranch_vccz {label}_X")
    a("s_sleep 1")
    a(f"s_branch {label}")
    a.label(label + "_X")
    a("s_mov_b64 exec, -1")

def gen(a):
    a.raw(f".globl {KNAME}\n.p2align 8\n.type {KNAME},@function")
    a.label(KNAME)
    a("s_cmp_ge_u32 s2, 256")
    a("s_cbranch_scc1 L_END")
    stamp(a, 0, True); stamp(a, 1)
    a("s_load_dwordx16 s[4:19], s[0:1], 0")
    a("s_load_dwordx4 s[20:23], s[0:1], 64")
    a("s_load_dwordx2 s[24:25], s[0:1], 80")
    a("v_lshrrev_b32 v2, 6, v0")
    a("v_and_b32 v1, 63, v0")
    a("s_and_b32 s36, s2, 7")
    a("s_lshr_b32 s37, s2, 3")
    a(f"v_readfirstlane_b32 s{S_WAVE}, v2")
    a("s_and_b32 s38, s36, 1")
    a("s_lshl_b32 s38, s38, 3")
    a("s_and_b32 s39, s37, 7")
    a("s_add_u32 s40, s38, s39")
    a("s_lshr_b32 s38, s36, 1")
    a("s_lshl_b32 s38, s38, 2")
    a("s_lshr_b32 s39, s37, 3")
    a("s_add_u32 s41, s38, s39")
    a("s_and_b32 s42, s41, 1")
    a("s_lshr_b32 s43, s41, 1")
    a("s_mul_i32 s44, s43, 6")
    a("s_mul_i32 s38, s43, 5")
    a("s_add_u32 s38, s38, 3")
    a("s_min_u32 s44, s44, s38")
    a("s_cmp_ge_u32 s43, 3")
    a("s_cselect_b32 s45, s42, 0")
    a("s_cmp_eq_u32 s43, 7")
    a("s_cselect_b32 s46, s42, 0")
    a("s_lshl_b32 s32, s36, 2")
    a("s_and_b32 s38, s37, 3")
    a("s_add_u32 s32, s32, s38")
    a("s_lshr_b32 s33, s37, 2")
    a(f"s_cmp_ge_u32 s{S_WAVE}, 4")
    a("s_cbranch_scc0 L_CONSUMER")

    a(f"s_sub_u32 s47, s{S_WAVE}, 4")
    a("v_lshrrev_b32 v4, 3, v1")
    a("v_lshrrev_b32 v5, 4, v1")
    a("v_and_b32 v6, 7, v1")
    a("v_xor_b32 v7, v6, v5")
    a("v_xor_b32 v8, 4, v7")
    a("s_lshl_b32 s38, s40, 7")
    a("s_lshl_b32 s39, s47, 5")
    a("s_add_u32 s38, s38, s39")
    a("v_add_u32 v4, s38, v4")
    a("v_lshlrev_b32 v4, 10, v4")
    a("v_lshl_add_u32 v2, v7, 4, v4")
    a("v_lshl_add_u32 v3, v8, 4, v4")
    a("v_add_u32 v3, 7168, v3")
    a("s_cmp_eq_u32 s42, 0")
    a("s_movk_i32 s38, 3072")
    a("s_movk_i32 s39, 2752")
    a("s_cselect_b32 s56, s38, s39")
    a("s_movk_i32 s38, 1024")
    a("s_movk_i32 s39, 128")
    a("s_cselect_b32 s57, s38, s39")
    a(f"s_mov_b32 s38, {512*3072}")
    a(f"s_mov_b32 s39, {512*2752}")
    a("s_cselect_b32 s54, s38, s39")
    a("s_lshl_b32 s38, s43, 7")
    a("s_lshl_b32 s39, s44, 6")
    a("s_cmp_eq_u32 s42, 0")
    a("s_cselect_b32 s58, s38, s39")
    a("s_mov_b32 s59, 0")
    a("s_mov_b32 s60, 0")
    a("s_mov_b32 s61, 0")
    a("s_lshl_b32 s62, s47, 12")
    a("s_mul_i32 s63, s47, 6144")
    a("s_add_u32 s63, s63, 16384")
    a("s_lshl_b32 s64, s56, 3")
    a("s_lshl_b32 s65, s56, 6")
    a("s_mov_b64 s[66:67], -1")
    a("s_mov_b64 s[68:69], -1")
    a("s_cmp_eq_u32 s45, 0")
    a("s_cselect_b32 s66, -1, 0xffff")
    a("s_cselect_b32 s69, -1, 0xffff")
    a("v_and_b32 v6, 15, v1")
    a("v_lshrrev_b32 v6, 2, v6")
    a("s_lshl_b32 s38, s47, 4")
    a("v_add_u32 v6, s38, v6")
    a("v_and_b32 v7, 3, v1")
    a("v_lshlrev_b32 v7, 4, v7")
    a("v_add_u32 v7, s58, v7")
    for j in range(3):
        a(f"v_add_u32 v13, {4*j}, v5")
        a("v_mul_u32_u24 v14, 43, v13")
        a("v_lshrrev_b32 v14, 8, v14")
        a("v_mul_u32_u24 v15, 6, v14")
        a("v_sub_u32 v15, v13, v15")
        a("v_lshl_add_u32 v14, v14, 2, v6")
        a("v_mul_lo_u32 v14, v14, s56")
        a("v_lshrrev_b32 v16, 1, v15")
        a("v_mul_lo_u32 v16, v16, s57")
        a("v_and_b32 v15, 1, v15")
        a("v_lshlrev_b32 v15, 6, v15")
        a("v_add3_u32 v14, v14, v16, v15")
        a(f"v_add_u32 v{10+j}, v14, v7")
    a("s_cmp_eq_u32 s47, 0")
    a("s_cselect_b32 s46, s46, 0")
    a("s_waitcnt lgkmcnt(0)")
    srd(a, 48, S_X, 2048*1024)
    a("s_cmp_eq_u32 s42, 0")
    a(f"s_cselect_b32 s52, s{S_WQKV}, s{S_W1}")
    a(f"s_cselect_b32 s53, s{S_WQKV+1}, s{S_W1+1}")
    a("s_and_b32 s53, s53, 0xffff")
    a("s_mov_b32 s55, 0x00020000")
    srd(a, SRD_WS, S_WS, WS_BYTES)

    def issue_tile():
        a("s_add_u32 m0, s61, s62")
        a(f"s_add_u32 s70, s59, {16384-2048}")
        a("buffer_load_dwordx4 v2, s[48:51], s59 offen lds")
        a("buffer_load_dwordx4 v3, s[48:51], s59 offen offset:1024 lds")
        a("buffer_load_dwordx4 v2, s[48:51], s70 offen offset:2048 lds")
        a("buffer_load_dwordx4 v3, s[48:51], s70 offen offset:3072 lds")
        a("s_add_u32 m0, s61, s63")
        a("s_add_u32 s71, s60, s64")
        for j in range(6):
            so = "s60" if j < 3 else "s71"
            if j > 0:
                a("s_add_u32 m0, m0, 1024")
            a(["s_mov_b64 exec, -1", "s_mov_b64 exec, s[66:67]", "s_mov_b64 exec, s[68:69]"][j % 3])
            a(f"buffer_load_dwordx4 v{10 + j%3}, s[52:55], {so} offen lds")
        a("s_mov_b64 exec, -1")
        a("s_add_u32 s59, s59, 128")
        a("s_add_u32 s60, s60, s65")
        a(f"s_add_u32 s61, s61, {STAGE}")
        a(f"s_cmp_eq_u32 s61, {4*STAGE}")
        a("s_cselect_b32 s61, 0, s61")

    a("s_cmp_eq_u32 s46, 0")
    a("s_cbranch_scc1 L_NOGATE")
    srd(a, 72, S_GATE, 1024)
    a("v_lshlrev_b32 v29, 1, v1")
    for t in range(8):
        a(f"buffer_load_ushort v{20+t}, v29, s[72:75], 0 offen offset:{128*t}")
    a("v_lshrrev_b32 v28, 2, v1")
    a("v_mul_u32_u24 v28, 1536, v28")
    a("v_and_b32 v29, 3, v1")
    a("v_lshl_add_u32 v28, v29, 6, v28")
    a(f"v_add_u32 v28, {16384 + 5*256}, v28")
    a.label("L_NOGATE")
    plan_after = {0: 1, 1: 2, 2: 1, 3: 1, 4: 1}
    issue_tile(); issue_tile()
    issued = 2
    stamp(a, 2)
    for t in range(8):
        a(f"s_waitcnt vmcnt({(issued - 1 - t) * 10})")
        stamp(a, 3 + t)
        lab = a.newlabel("L_NG")
        a("s_cmp_eq_u32 s46, 0")
        a(f"s_cbranch_scc1 {lab}")
        a(f"v_add_u32 v29, {(t%4)*STAGE}, v28")
        a(f"ds_write_b16 v29, v{20+t}")
        a("s_waitcnt lgkmcnt(0)")
        a.label(lab)
        a("s_barrier")
        for _ in range(plan_after.get(t, 0)):
            assert issued <= t + 3 + (1 if t == 0 else 0) or issued < 4 or issued - 4 < t, (issued, t)
            issue_tile(); issued += 1
    assert issued == 8
    a("s_cmp_lg_u32 s47, 0")
    a("s_cbranch_scc1 L_NOINITCHK")
    srd(a, 72, S_DBG, 256)
    a("v_lshlrev_b32 v29, 2, v1")
    a("v_mov_b32 v30, 0x01010101")
    poll(a, 29, 72, "0", "-1", 30, 31, "L_PINIT")
    a.label("L_NOINITCHK")
    a("s_barrier")
    stamp(a, 11)
    gen_attention(a)

    a.label("L_CONSUMER")
    a(f"s_lshr_b32 s47, s{S_WAVE}, 1")
    a(f"s_and_b32 s48, s{S_WAVE}, 1")
    ACC = 32
    def acc(u, rg): return ACC + (u*2+rg)*16
    FR = 128
    def xf(p, rg): return FR + 20*p + 4*rg
    def wf(p, u): return FR + 20*p + 8 + 4*u
    a("v_and_b32 v8, 31, v1")
    a("v_lshrrev_b32 v9, 5, v1")
    a("v_lshrrev_b32 v10, 1, v8")
    a("v_and_b32 v10, 7, v10")
    a("v_xor_b32 v10, v10, v9")
    a("s_lshl_b32 s38, s47, 6")
    a("v_add_u32 v11, s38, v8")
    a("v_lshlrev_b32 v11, 7, v11")
    a("v_lshl_add_u32 v2, v10, 4, v11")
    a("v_xor_b32 v3, 32, v2")
    a("v_xor_b32 v4, 64, v2")
    a("v_xor_b32 v5, 96, v2")
    a("v_mul_u32_u24 v6, 3072, v9")
    a("v_and_b32 v10, 15, v1")
    a("v_lshrrev_b32 v10, 2, v10")
    a("v_lshl_add_u32 v6, v10, 6, v6")
    a("v_bfe_u32 v10, v1, 4, 1")
    a("v_lshl_add_u32 v6, v10, 5, v6")
    a("v_and_b32 v10, 3, v1")
    a("v_lshl_add_u32 v6, v10, 3, v6")
    a("s_lshl_b32 s38, s48, 8")
    a("s_add_u32 s38, s38, 16384")
    a("v_add_u32 v6, s38, v6")
    a("s_lshl_b32 s49, s40, 1")
    a("s_add_u32 s49, s49, s47")
    a("s_lshl_b32 s50, s49, 1")
    a("s_lshl_b32 s38, s43, 1")
    a("s_add_u32 s38, s38, s48")
    a("s_lshl_b32 s39, s38, 7")
    a("s_lshl_b32 s51, s49, 2")
    a("s_add_u32 s39, s39, s51")
    a(f"s_add_u32 s39, s39, {WS_FQ}")
    a("s_lshl_b32 s51, s49, 7")
    a("s_lshl_b32 s38, s38, 2")
    a("s_add_u32 s51, s51, s38")
    a(f"s_add_u32 s51, s51, {WS_FA}")
    a("s_cmp_eq_u32 s42, 0")
    a("s_cselect_b32 s51, s39, s51")
    a("s_lshl_b32 s38, s33, 2")
    a(f"s_add_u32 s38, s38, s{S_WAVE}")
    a("s_lshl_b32 s38, s38, 2")
    a("s_lshl_b32 s39, s32, 7")
    a("s_add_u32 s38, s38, s39")
    a(f"s_add_u32 s52, s38, {WS_FO}")
    a("v_mov_b32 v10, 0")
    a("s_waitcnt lgkmcnt(0)")
    srd(a, SRD_WS, S_WS, WS_BYTES)
    WS = f"s[{SRD_WS}:{SRD_WS+3}]"
    a("s_mov_b64 exec, 1")
    a(f"buffer_store_dword v10, v10, {WS}, s51 offen sc1")
    a(f"buffer_store_dword v10, v10, {WS}, s52 offen sc1")
    a("s_mov_b64 exec, -1")
    a("s_mov_b32 s53, 0")
    a("s_mov_b32 s54, 0")
    a(f"s_mov_b32 s55, {STAGE}")
    a("s_cmp_eq_u32 s42, 0")
    a("s_cbranch_scc0 L_C_W1")

    def reads(p, sidx):
        r = []
        r.append(f"ds_read_b128 {v(xf(p,0),4)}, v{2+sidx}")
        for rr in range(2):
            r.append(f"ds_read_b64_tr_b16 {v(wf(p,0)+2*rr,2)}, v6 offset:{(4*sidx+rr)*1536}")
        r.append(f"ds_read_b128 {v(xf(p,1),4)}, v{2+sidx} offset:4096")
        for u in (1, 2):
            for rr in range(2):
                r.append(f"ds_read_b64_tr_b16 {v(wf(p,u)+2*rr,2)}, v6 offset:{(4*sidx+rr)*1536 + u*512}")
        return r
    def mfmas(p, vmode):
        m = []
        for u in range(3):
            for rg in range(2):
                A, B = v(wf(p,u),4), v(xf(p,rg),4)
                if vmode and u == 2:
                    A, B = B, A
                m.append(f"v_mfma_f32_32x32x16_bf16 {v(acc(u,rg),16)}, {A}, {B}, {v(acc(u,rg),16)}")
        return m
    need = [3, 4, 6, 6, 8, 8]
    def kstep(p, nxt_reads, vmode, pre=None):
        m = mfmas(p, vmode)
        issued = 0
        for i in range(6):
            if pre is None:
                if i == 0 or need[i] != need[i-1]:
                    a(f"s_waitcnt lgkmcnt({min(15, 8 - need[i] + issued)})")
            a(m[i])
            if i < 4:
                a(nxt_reads[2*i]); a(nxt_reads[2*i+1]); issued += 2
    def mainloop(tag, vmode):
        a("s_waitcnt vmcnt(0)")
        stamp(a, 2)
        a("s_barrier")
        stamp(a, 3)
        for r in reads(0, 0): a(r)
        lab = a.newlabel("L_NB")
        a(f"s_cmp_lg_u32 s{S_WAVE}, 0")
        a(f"s_cbranch_scc1 {lab}")
        srd(a, 72, S_DBG, 256)
        a("v_mov_b32 v10, 1")
        a("v_mov_b32 v11, 0")
        a("s_mov_b64 exec, 1")
        a("buffer_store_byte v10, v11, s[72:75], s2 offen sc1")
        a("s_mov_b64 exec, -1")
        a.label(lab)
        a.label(f"L_C_LOOP_{tag}")
        kstep(0, reads(1, 1), vmode)
        kstep(1, reads(0, 2), vmode)
        kstep(0, reads(1, 3), vmode)
        a("s_add_u32 s53, s53, 1")
        a("s_cmp_eq_u32 s53, 4")
        a(f"s_cselect_b32 s56, {(-3*STAGE) & 0xffffffff}, s55")
        a("s_cselect_b32 s53, 0, s53")
        a("s_waitcnt lgkmcnt(0)")
        a("s_barrier")
        for i in range(2, 7):
            a(f"v_add_u32 v{i}, s56, v{i}")
        kstep(1, reads(0, 0), vmode, pre=True)
        a("s_add_u32 s54, s54, 1")
        a("s_cmp_lt_u32 s54, 8")
        a(f"s_cbranch_scc1 L_C_LOOP_{tag}")
        a("s_waitcnt lgkmcnt(0)")
        a("s_nop 15")
        stamp(a, 4)

    for i in range(96):
        a(f"v_mov_b32 v{ACC+i}, 0")
    mainloop("QKV", True)
    a(f"v_mov_b32 v10, {hexf(QSCALE)}")
    a(f"v_mov_b32 v11, {hexf(QSCALE)}")
    a("v_lshlrev_b32 v12, 4, v1")
    a("s_lshl_b32 s57, s43, 2")
    a("s_lshl_b32 s38, s48, 1")
    a("s_add_u32 s57, s57, s38")
    a("s_lshl_b32 s57, s57, 6")
    a("s_add_u32 s57, s57, s50")
    a("s_lshl_b32 s57, s57, 10")
    a("v_bfe_u32 v13, v1, 4, 1")
    a("v_lshlrev_b32 v13, 16, v13")
    a("v_lshl_add_u32 v13, v9, 8, v13")
    a("v_and_b32 v14, 15, v1")
    a("v_lshl_add_u32 v13, v14, 4, v13")
    T = 168
    for u in (1, 2, 0):
        for rg in range(2):
            b = acc(u, rg)
            t = T + (u*2+rg) * 8
            if u == 0:
                for i in range(0, 16, 2):
                    a(f"v_pk_mul_f32 {v(b+i,2)}, {v(b+i,2)}, v[10:11]")
            for i in range(8):
                a(f"v_cvt_pk_bf16_f32 v{t+i}, v{b+2*i}, v{b+2*i+1}")
            base = [WS_Q, WS_K, WS_V][u]
            if u < 2:
                a(f"s_add_u32 s38, s57, {base + rg*1024}")
                a(f"s_add_u32 s39, s57, {base + rg*1024 + 65536}")
                a(f"buffer_store_dwordx4 {v(t,4)}, v12, {WS}, s38 offen sc1")
                a(f"buffer_store_dwordx4 {v(t+4,4)}, v12, {WS}, s39 offen sc1")
            else:
                a(f"s_add_u32 s38, s57, {base + rg*1024}")
                a(f"buffer_store_dwordx4 {v(t,4)}, v13, {WS}, s38 offen sc1")
                a(f"buffer_store_dwordx4 {v(t+4,4)}, v13, {WS}, s38 offen offset:512 sc1")
    a("s_branch L_C_SIGNAL")

    a.label("L_C_W1")
    srd(a, 72, S_B1, 1376*2)
    a("s_add_u32 s57, s44, s48")
    a("s_lshl_b32 s38, s57, 6")
    a("v_lshlrev_b32 v10, 3, v9")
    for u in range(3):
        for j in range(4):
            a(f"buffer_load_dwordx2 {v(T + (u*4+j)*2, 2)}, v10, s[72:75], s38 offen offset:{u*128 + j*16}")
    a("s_waitcnt vmcnt(0)")
    for u in range(3):
        for j in range(4):
            for d in range(2):
                src = T + (u*4+j)*2 + d
                for rg in range(2):
                    a(f"v_lshlrev_b32 v{acc(u,rg)+4*j+2*d}, 16, v{src}")
                    a(f"v_and_b32 v{acc(u,rg)+4*j+2*d+1}, 0xffff0000, v{src}")
    mainloop("W1", False)
    a(f"v_mov_b32 v10, {hexf(LOG2E)}")
    a(f"v_mov_b32 v11, {hexf(LOG2E)}")
    a("v_mov_b32 v14, 2.0")
    a("v_mov_b32 v15, 2.0")
    a("v_lshlrev_b32 v12, 4, v1")
    a(f"s_mul_i32 s58, s50, {NKS}")
    a("s_lshl_b32 s38, s57, 1")
    a("s_add_u32 s58, s58, s38")
    a("s_lshl_b32 s58, s58, 10")
    a(f"s_add_u32 s58, s58, {WS_A3}")
    a("s_and_b32 s45, s45, s48")
    def mish_tile(b, t):
        for q in range(4):
            h0, h1 = b + 4*q, b + 4*q + 2
            y0, y1, e0, e1, u0, u1 = 16, 18, 20, 22, 24, 26
            a(f"v_pk_mul_f32 {v(y0,2)}, {v(h0,2)}, v[10:11]")
            a(f"v_pk_mul_f32 {v(y1,2)}, {v(h1,2)}, v[10:11]")
            for r in (y0, y0+1, y1, y1+1):
                a(f"v_min_f32 v{r}, 0x41f00000, v{r}")
            for k in range(4):
                a(f"v_exp_f32 v{e0+k}, v{y0+k}")
            a(f"v_pk_add_f32 {v(u0,2)}, {v(e0,2)}, v[14:15]")
            a(f"v_pk_add_f32 {v(u1,2)}, {v(e1,2)}, v[14:15]")
            a(f"v_pk_mul_f32 {v(e0,2)}, {v(e0,2)}, {v(u0,2)}")
            a(f"v_pk_mul_f32 {v(e1,2)}, {v(e1,2)}, {v(u1,2)}")
            a(f"v_pk_add_f32 {v(u0,2)}, {v(e0,2)}, v[14:15]")
            a(f"v_pk_add_f32 {v(u1,2)}, {v(e1,2)}, v[14:15]")
            for k in range(4):
                a(f"v_rcp_f32 v{y0+k}, v{u0+k}")
            a("s_nop 0")
            a(f"v_pk_mul_f32 {v(e0,2)}, {v(e0,2)}, {v(y0,2)}")
            a(f"v_pk_mul_f32 {v(e1,2)}, {v(e1,2)}, {v(y1,2)}")
            a(f"v_pk_mul_f32 {v(e0,2)}, {v(e0,2)}, {v(h0,2)}")
            a(f"v_pk_mul_f32 {v(e1,2)}, {v(e1,2)}, {v(h1,2)}")
            a(f"v_cvt_pk_bf16_f32 v{t+2*q}, v{e0}, v{e0+1}")
            a(f"v_cvt_pk_bf16_f32 v{t+2*q+1}, v{e1}, v{e1+1}")
    for u in range(3):
        if u == 2:
            a("s_cmp_lg_u32 s45, 0")
            a("s_cbranch_scc1 L_C_GATE")
        for rg in range(2):
            t = T + (u*2+rg) * 8
            mish_tile(acc(u, rg), t)
            a(f"s_add_u32 s38, s58, {(rg*NKS + 4*u)*1024}")
            a(f"buffer_store_dwordx4 {v(t,4)}, v12, {WS}, s38 offen sc1")
            a(f"buffer_store_dwordx4 {v(t+4,4)}, v12, {WS}, s38 offen offset:1024 sc1")
    a("s_branch L_C_SIGNAL")
    a.label("L_C_GATE")
    a("s_cmp_eq_u32 s46, 0")
    a("s_cbranch_scc1 L_C_SIGNAL")
    for rg in range(2):
        z = acc(2, rg)
        a(f"v_mul_f32 v{16+rg}, {hexf(-LOG2E)}, v{z}")
        a(f"v_min_f32 v{16+rg}, 0x42fc0000, v{16+rg}")
        a(f"v_exp_f32 v{16+rg}, v{16+rg}")
        a("s_nop 0")
        a(f"v_add_f32 v{16+rg}, 1.0, v{16+rg}")
        a(f"v_rcp_f32 v{16+rg}, v{16+rg}")
        a("v_lshlrev_b32 v18, 2, v1")
        a("s_lshl_b32 s38, s50, 7")
        a(f"s_add_u32 s38, s38, {WS_G + rg*128}")
        a("s_mov_b32 exec_hi, 0")
        a(f"buffer_store_dword v{16+rg}, v18, {WS}, s38 offen sc1")
        a("s_mov_b64 exec, -1")
    a.label("L_C_SIGNAL")
    stamp(a, 5)
    a("v_mov_b32 v10, 1")
    a("v_mov_b32 v11, 0")
    a("s_waitcnt vmcnt(0)")
    a("s_mov_b64 exec, 1")
    a(f"buffer_store_dword v10, v11, {WS}, s51 offen sc1")
    a("s_mov_b64 exec, -1")
    stamp(a, 6)
    gen_p3(a)
    a.label("L_END")
    a("s_endpgm")

def gen_attention(a):
    WS = f"s[{SRD_WS}:{SRD_WS+3}]"
    a("s_lshl_b32 s36, s33, 2")
    a("s_add_u32 s36, s36, s47")
    a("s_lshl_b32 s37, s32, 1")
    a("s_sub_i32 s38, 8, s37")
    a("v_lshlrev_b32 v2, 4, v1")
    a("v_lshrrev_b32 v9, 5, v1")
    a("v_and_b32 v8, 31, v1")
    a("v_and_b32 v3, 15, v1")
    a("v_lshlrev_b32 v3, 4, v3")
    a("v_lshl_add_u32 v3, v9, 8, v3")
    KF, VF, QF = 16, 56, 136
    S0, S1, SM, CM, OA, P0, P1, MK = 144, 160, 176, 192, 208, 224, 232, 240
    for i in range(80):
        a(f"v_mov_b32 v{VF+i}, 0x3f803f80")
    a("s_lshl_b32 s39, s36, 16")
    for i in range(10):
        a(f"s_add_i32 s62, s37, {i-8}")
        a("s_max_i32 s62, s62, 0")
        a("s_lshl_b32 s62, s62, 10")
        a(f"s_add_u32 s{50+i}, s62, s39")
    a("v_lshlrev_b32 v4, 2, v9")
    a("v_sub_u32 v4, v8, v4")
    for i in range(16):
        c = 8*(i//4) + (i % 4)
        a(f"v_cmp_le_i32 s[{64+2*i}:{65+2*i}], {c}, v4")
    a("v_mov_b32 v5, 0xffff")
    a("v_mov_b32 v6, 0xffff0000")
    a("s_nop 1")
    for p in range(8):
        a(f"v_cndmask_b32 v10, 0, v5, s[{64+4*p}:{65+4*p}]")
        a(f"v_cndmask_b32 v11, 0, v6, s[{66+4*p}:{67+4*p}]")
        a(f"v_or_b32 v{MK+p}, v10, v11")
    a("v_sub_u32 v10, s32, v1")
    a("v_max_i32 v10, 0, v10")
    a("v_lshlrev_b32 v10, 2, v10")
    a("s_lshr_b32 s62, s36, 1")
    a("s_lshl_b32 s62, s62, 7")
    a(f"s_add_u32 s62, s62, {WS_FQ}")
    a("v_mov_b32 v11, 1")
    stamp(a, 12)
    poll(a, 10, SRD_WS, "s62", "0x1f", 11, 12, "L_PQ")
    stamp(a, 13)
    vm = VM()
    a(f"buffer_load_dwordx4 {v(QF,4)}, v2, {WS}, s58 offen sc1"); vm.issue("q0")
    order = [8, 0, 1, 2, 3, 4, 5, 6, 7, 9]
    for i in order:
        a(f"s_add_u32 s62, s{50+i}, {WS_K}")
        a(f"buffer_load_dwordx4 {v(KF+4*i,4)}, v2, {WS}, s62 offen sc1"); vm.issue(("k", i))
    a(f"buffer_load_dwordx4 {v(QF+4,4)}, v2, {WS}, s59 offen sc1"); vm.issue("q1")
    a("s_mov_b32 exec_lo, 0xffff")
    a("s_mov_b32 exec_hi, 0xffff")
    for i in order:
        a(f"s_add_u32 s62, s{50+i}, {WS_V}")
        a(f"buffer_load_dwordx4 {v(VF+8*i,4)}, v3, {WS}, s62 offen sc1"); vm.issue()
        a(f"buffer_load_dwordx4 {v(VF+8*i+4,4)}, v3, {WS}, s62 offen offset:512 sc1"); vm.issue(("v", i))
    a("s_mov_b64 exec, -1")
    NEG = hexf(-1.0e30)
    M32 = "v_mfma_f32_32x32x16_bf16"

    def epilogue(o):
        a(f"v_rcp_f32 v5, v{OA+8}")
        a(f"s_add_u32 s62, s37, {o}")
        a(f"s_mul_i32 s62, s62, {NKS}")
        for i in range(8):
            a(f"v_mul_f32 v{OA+i}, v{OA+i}, v5")
        a("s_add_u32 s62, s62, s36")
        a("s_lshl_b32 s62, s62, 10")
        a(f"s_add_u32 s62, s62, {WS_A3 + 86*1024}")
        for p in range(4):
            a(f"v_cvt_pk_bf16_f32 v{12+p}, v{OA+2*p}, v{OA+2*p+1}")
        a(f"buffer_store_dwordx4 v[12:15], v2, {WS}, s62 offen sc1")

    def qblock_fast(o, first):
        Q = v(QF+4*o, 4)
        def smfma(dst, i, C):
            if first: vm.wait_for(a, ("k", i), "q0")
            a(f"{M32} {v(dst,16)}, {v(KF+4*i,4)}, {Q}, {C}")
        def pv1(i, P, m):
            if first and m == 0: vm.wait_for(a, ("v", i))
            a(f"{M32} {v(OA,16)}, {v(VF+8*i+4*m,4)}, {v(P+4*m,4)}, {v(OA,16)}")
        full = list(range(o+1, o+8))
        far, diag = o, o+8
        if not first:
            a("s_waitcnt vmcnt(1)")
        B3 = [S0, S1, OA]
        smfma(SM, diag, "0")
        smfma(CM, far, "0")
        smfma(B3[0], full[0], "0")
        smfma(B3[1], full[1], "0")
        a("s_nop 9")
        for i in range(16):
            a(f"v_cndmask_b32 v{SM+i}, v{CM+i}, v{SM+i}, s[{64+2*i}:{65+2*i}]")
        smfma(B3[2], full[2], "0")
        a(f"v_max_f32 v4, v{SM}, v{SM+1}")
        a(f"v_max_f32 v5, v{SM+2}, v{SM+3}")
        for i in range(4, 16, 4):
            a(f"v_max3_f32 v4, v4, v{SM+i}, v{SM+i+1}")
            a(f"v_max3_f32 v5, v5, v{SM+i+2}, v{SM+i+3}")
        for n in range(7):
            cur = B3[n % 3]
            for k in range(0, 16, 4):
                a(f"v_max3_f32 v4, v4, v{cur+k}, v{cur+k+1}")
                a(f"v_max3_f32 v5, v5, v{cur+k+2}, v{cur+k+3}")
            if n + 3 < 7:
                smfma(cur, full[n+3], "0")
        a("v_max_f32 v4, v4, v5")
        a("v_mov_b32 v5, v4")
        a("s_nop 1")
        a("v_permlane32_swap_b32 v4, v5")
        a("s_nop 1")
        a("v_max_f32 v4, v4, v5")
        a("v_sub_f32 v4, 0, v4")
        a("v_mov_b32 v5, v4")
        for i in range(0, 16, 2):
            a(f"v_mov_b64 {v(CM+i,2)}, v[4:5]")
        C = v(CM, 16)
        Sb = [S0, S1]
        for i in range(0, 16, 2):
            a(f"v_pk_add_f32 {v(SM+i,2)}, {v(SM+i,2)}, v[4:5]")
            if i == 2:
                smfma(Sb[0], full[0], C)
        for i in range(16):
            a(f"v_exp_f32 v{SM+i}, v{SM+i}")
        a("s_nop 0")
        for p in range(8):
            a(f"v_cvt_pk_bf16_f32 v{P1+p}, v{SM+2*p}, v{SM+2*p+1}")
        PD, PF = SM, SM + 8
        for p in range(8):
            a(f"v_and_b32 v{PD+p}, v{P1+p}, v{MK+p}")
        for p in range(8):
            a(f"v_xor_b32 v{PF+p}, v{P1+p}, v{PD+p}")
        pend = [(diag, PD, 0), (diag, PD, 1), (far, PF, 0), (far, PF, 1)]
        firstpv = [True]
        def do_pv():
            i, P, m = pend.pop(0)
            if first and m == 0: vm.wait_for(a, ("v", i))
            Cc = "0" if firstpv[0] else v(OA,16)
            firstpv[0] = False
            a(f"{M32} {v(OA,16)}, {v(VF+8*i+4*m,4)}, {v(P+4*m,4)}, {Cc}")
        for n, i in enumerate(full):
            cur = Sb[n % 2]
            P = [P0, P1][n % 2]
            for k in range(16):
                a(f"v_exp_f32 v{cur+k}, v{cur+k}")
                if k == 1 and n + 1 < 7:
                    smfma(Sb[(n+1) % 2], full[n+1], C)
                if k in (5, 9, 13) and pend:
                    do_pv()
            for p in range(8):
                a(f"v_cvt_pk_bf16_f32 v{P+p}, v{cur+2*p}, v{cur+2*p+1}")
                if p == 3 and pend and n == 0:
                    do_pv()
            pend += [(i, P, 0), (i, P, 1)]
        a("s_nop 1")
        while pend: do_pv()
        a("s_nop 15")
        epilogue(o)

    def qblock_slow(o):
        Q = v(QF+4*o, 4)
        Sb = [S0, S1]
        def smfma(dst, i, C):
            a(f"{M32} {v(dst,16)}, {v(KF+4*i,4)}, {Q}, {C}")
        full = list(range(o+1, o+8))
        far, diag = o, o+8
        a(f"v_mov_b32 v4, {NEG}")
        smfma(SM, diag, "0")
        smfma(Sb[0], full[0], "0")
        for i in range(16):
            a(f"v_mov_b32 v{CM+i}, {NEG}")
        for i in range(16):
            a(f"v_cndmask_b32 v{SM+i}, v{CM+i}, v{SM+i}, s[{64+2*i}:{65+2*i}]")
        for i in range(0, 16, 2):
            a(f"v_max3_f32 v4, v4, v{SM+i}, v{SM+i+1}")
        for n, i in enumerate(full):
            cur = Sb[n % 2]
            if n + 1 < len(full):
                smfma(Sb[(n+1) % 2], full[n+1], "0")
            lab = a.newlabel("L_S1")
            a(f"s_cmp_lt_i32 {i}, s38")
            a(f"s_cbranch_scc1 {lab}")
            for k in range(0, 16, 2):
                a(f"v_max3_f32 v4, v4, v{cur+k}, v{cur+k+1}")
            a.label(lab)
            a("s_nop 9")
        a("v_mov_b32 v5, v4")
        a("s_nop 1")
        a("v_permlane32_swap_b32 v4, v5")
        a("s_nop 1")
        a("v_max_f32 v4, v4, v5")
        a("v_sub_f32 v4, 0, v4")
        for i in range(16):
            a(f"v_mov_b32 v{CM+i}, v4")
        for i in range(16):
            a(f"v_mov_b32 v{OA+i}, 0")
        C = v(CM, 16)
        smfma(Sb[0], full[0], C)
        for i in range(16):
            a(f"v_add_f32 v{SM+i}, v{SM+i}, v4")
        for i in range(16):
            a(f"v_exp_f32 v{SM+i}, v{SM+i}")
        a("s_nop 0")
        for p in range(8):
            a(f"v_cvt_pk_bf16_f32 v{P1+p}, v{SM+2*p}, v{SM+2*p+1}")
        def pv(i, P):
            for m in range(2):
                a(f"{M32} {v(OA,16)}, {v(VF+8*i+4*m,4)}, {v(P+4*m,4)}, {v(OA,16)}")
        a("s_nop 1")
        pv(diag, P1)
        for n, i in enumerate(full):
            cur = Sb[n % 2]
            P = [P0, P1][n % 2]
            if n + 1 < len(full):
                smfma(Sb[(n+1) % 2], full[n+1], C)
            lab = a.newlabel("L_S2")
            a(f"s_cmp_lt_i32 {i}, s38")
            a(f"s_cbranch_scc1 {lab}")
            for k in range(16):
                a(f"v_exp_f32 v{cur+k}, v{cur+k}")
            a("s_nop 0")
            for p in range(8):
                a(f"v_cvt_pk_bf16_f32 v{P+p}, v{cur+2*p}, v{cur+2*p+1}")
            a("s_nop 1")
            pv(i, P)
            a.label(lab)
            a("s_nop 9")
        a("s_nop 7")
        epilogue(o)
        a("s_nop 1")

    a("s_cmp_lt_u32 s32, 4")
    a("s_cbranch_scc1 L_ATT_SLOW")
    qblock_fast(0, True)
    stamp(a, 14)
    qblock_fast(1, False)
    a("s_branch L_ATT_DONE")
    a.label("L_ATT_SLOW")
    a("s_waitcnt vmcnt(0)")
    qblock_slow(0)
    qblock_slow(1)
    a.label("L_ATT_DONE")
    stamp(a, 15)
    a("s_lshl_b32 s62, s32, 7")
    a("s_lshl_b32 s63, s36, 2")
    a("s_add_u32 s62, s62, s63")
    a(f"s_add_u32 s62, s62, {WS_FO}")
    a("v_mov_b32 v10, 1")
    a("v_mov_b32 v11, 0")
    a("s_waitcnt vmcnt(0)")
    a("s_mov_b64 exec, 1")
    a(f"buffer_store_dword v10, v11, {WS}, s62 offen sc1")
    stamp(a, 16); stamp(a, 17, True)
    stamp_out(a)
    a("s_endpgm")

def gen_p3(a):
    WS = f"s[{SRD_WS}:{SRD_WS+3}]"
    W = f"s{S_WAVE}"
    DA, DB = 6, 20
    NS = 30
    a("v_lshlrev_b32 v2, 4, v1")
    a(f"v_add_u32 v3, {NKS*1024}, v2")
    a("v_and_b32 v10, 15, v1")
    a("v_lshrrev_b32 v10, 2, v10")
    a("v_lshl_add_u32 v11, v9, 2, v10")
    a("v_lshlrev_b32 v4, 10, v11")
    a("v_bfe_u32 v11, v1, 4, 1")
    a("v_lshl_add_u32 v4, v11, 6, v4")
    a("v_and_b32 v12, 3, v1")
    a("v_lshl_add_u32 v4, v12, 4, v4")
    a("s_lshl_b32 s48, s33, 7")
    a("v_add_u32 v4, s48, v4")
    a(f"v_add_u32 v5, {8192-1024}, v4")
    a("v_lshlrev_b32 v6, 9, v9")
    a("v_lshl_add_u32 v6, v10, 6, v6")
    a("v_lshl_add_u32 v6, v11, 5, v6")
    a("v_lshl_add_u32 v6, v12, 3, v6")
    a(f"s_mul_i32 s49, {W}, {DB*2048}")
    a("v_add_u32 v6, s49, v6")
    srd(a, 36, S_W2, 1376*1024)
    srd(a, 40, S_WO, 512*1024)
    srd(a, 44, S_OUT, 2048*1024)
    a(f"s_mul_i32 s50, s32, {2*NKS}")
    a(f"s_add_u32 s50, s50, {W}")
    a("s_lshl_b32 s50, s50, 10")
    a(f"s_add_u32 s50, s50, {WS_A3}")
    a(f"s_lshl_b32 s51, {W}, 14")
    ACB, ACA, AR, BF = 16, 80, 144, 144 + 8*8
    vm = VM()
    def issueB(n):
        slot = n % DB
        boff, bs = (n*65536, "s[36:39]") if n < 22 else ((n-22)*65536, "s[40:43]")
        a(f"s_add_u32 m0, s49, {slot*2048}")
        a(f"s_add_u32 s53, s51, {boff}")
        a(f"buffer_load_dwordx4 v4, {bs}, s53 offen lds"); vm.issue()
        a(f"buffer_load_dwordx4 v5, {bs}, s53 offen offset:1024 lds"); vm.issue(("b", n))
    def aslot(n): return (n % DA) if n < 22 else (n - 22)
    def issueA(n):
        aoff = n*4096 if n < 22 else (86 + 4*(n-22))*1024
        r = AR + 8*aslot(n)
        a(f"s_add_u32 s52, s50, {aoff}")
        a(f"buffer_load_dwordx4 {v(r,4)}, v2, {WS}, s52 offen sc1"); vm.issue()
        a(f"buffer_load_dwordx4 {v(r+4,4)}, v3, {WS}, s52 offen sc1"); vm.issue(("a", n))
    for n in range(DB):
        issueB(n)
        for i in range(7):
            k = n*7 + i
            if k < 128: a(f"v_mov_b32 v{ACB+k}, 0")
    a("v_lshlrev_b32 v10, 2, v1")
    a("v_mov_b32 v11, 1")
    a("s_lshl_b32 s54, s32, 7")
    a(f"s_add_u32 s55, s54, {WS_FA}")
    stamp(a, 7)
    poll(a, 10, SRD_WS, "s55", "0xffff", 11, 12, "L_PA")
    stamp(a, 8)
    vm = VM()
    for n in range(DB): vm.tags[("b", n)] = 0
    a("v_lshlrev_b32 v10, 2, v8")
    a("s_lshl_b32 s53, s32, 8")
    a(f"s_add_u32 s53, s53, {WS_G}")
    a(f"buffer_load_dword v14, v10, {WS}, s53 offen sc1"); vm.issue()
    a(f"buffer_load_dword v15, v10, {WS}, s53 offen offset:128 sc1"); vm.issue()
    for n in range(DA):
        issueA(n)
    def breads(n):
        bf = BF + 8*(n % 2)
        slot = n % DB
        for u in range(2):
            for r in range(2):
                a(f"ds_read_b64_tr_b16 {v(bf+4*u+2*r,2)}, v6 offset:{slot*2048 + r*1024 + u*256}")
    def step(n):
        bf = BF + 8*(n % 2)
        vm.wait_for(a, ("a", n), ("b", n))
        breads(n)
        skip = None
        if n == 21:
            skip = a.newlabel("L_SKIP")
            a(f"s_cmp_ge_u32 {W}, 2")
            a(f"s_cbranch_scc1 {skip}")
        AC = ACB if n < 22 else ACA
        for u in range(2):
            a(f"s_waitcnt lgkmcnt({2 if u == 0 else 0})")
            for rg in range(2):
                d = AC + (rg*2+u)*16
                a(f"v_mfma_f32_32x32x16_bf16 {v(d,16)}, {v(bf+4*u,4)}, {v(AR+8*aslot(n)+4*rg,4)}, {v(d,16)}")
        if skip:
            a.label(skip)
            a("s_waitcnt lgkmcnt(0)")
    for n in range(22):
        step(n)
        if n + DA < 22: issueA(n + DA)
        if n + DB < NS: issueB(n + DB)
    stamp(a, 9)
    a("v_lshlrev_b32 v10, 4, v1")
    a(f"s_lshl_b32 s53, {W}, 2")
    a("s_add_u32 s54, s54, s53")
    a(f"s_add_u32 s55, s54, {WS_FO}")
    poll(a, 10, SRD_WS, "s55", "0xff", 11, 12, "L_PO")
    stamp(a, 10)
    vm = VM()
    for n in range(NS): vm.tags[("b", n)] = 0
    for n in range(22, NS): issueA(n)
    a("v_sub_f32 v12, 1.0, v14")
    a("v_sub_f32 v13, 1.0, v15")
    for rg in range(2):
        for i in range(32):
            a(f"v_mul_f32 v{ACB+rg*32+i}, v{ACB+rg*32+i}, v{12+rg}")
    for n in range(22, NS): step(n)
    a("s_nop 15")
    stamp(a, 11)
    for rg in range(2):
        for i in range(32):
            a(f"v_fmac_f32 v{ACB+rg*32+i}, v{ACA+rg*32+i}, v{14+rg}")
    a("s_barrier")
    PITCH = 272
    a(f"s_mul_i32 s52, {W}, {64*PITCH}")
    a(f"v_mul_u32_u24 v10, {PITCH}, v8")
    a("v_lshl_add_u32 v10, v9, 4, v10")
    a("v_add_u32 v10, s52, v10")
    for rg in range(2):
        for u in range(2):
            for j in range(4):
                r = ACB + (rg*2+u)*16 + 4*j
                a(f"ds_write_b128 v10, {v(r,4)} offset:{rg*32*PITCH + (32*u+8*j)*4}")
    a("v_lshrrev_b32 v10, 3, v1")
    a(f"s_lshl_b32 s52, {W}, 4")
    a("v_add_u32 v10, s52, v10")
    a("v_and_b32 v11, 7, v1")
    a(f"v_mul_u32_u24 v12, {PITCH}, v10")
    a("v_lshl_add_u32 v12, v11, 5, v12")
    a("v_lshlrev_b32 v13, 10, v10")
    a("v_lshl_add_u32 v13, v11, 4, v13")
    a("s_lshl_b32 s52, s32, 16")
    a("s_add_u32 s52, s52, s48")
    a("s_add_u32 s53, s52, 8192")
    a("s_waitcnt lgkmcnt(0)")
    a("s_barrier")
    R = 80
    for ps in range(2):
        for w in range(4):
            for hh in range(2):
                a(f"ds_read_b128 {v(R + ps*32 + w*8 + hh*4, 4)}, v12 offset:{w*64*PITCH + ps*8*PITCH + hh*16}")
    for ps in range(2):
        a(f"s_waitcnt lgkmcnt({8 if ps == 0 else 0})")
        b = R + ps*32
        for i in range(8):
            a(f"v_add_f32 v{b+i}, v{b+i}, v{b+8+i}")
            a(f"v_add_f32 v{b+16+i}, v{b+16+i}, v{b+24+i}")
        for i in range(8):
            a(f"v_add_f32 v{b+i}, v{b+i}, v{b+16+i}")
        for p in range(4):
            a(f"v_cvt_pk_bf16_f32 v{b+8+p}, v{b+2*p}, v{b+2*p+1}")
        a(f"buffer_store_dwordx4 {v(b+8,4)}, v13, s[44:47], s{52+ps} offen")
    stamp(a, 12)
    if DBG: a("s_waitcnt vmcnt(0)")
    stamp(a, 13); stamp(a, 14, True)
    stamp_out(a)

def main():
    a = Asm()
    hdr = open("cdna_kernels/" + NAME + ".s.ref").read().split("\n")
    hdr = [l for l in hdr if l.startswith(";") and "@launch" not in l]
    for l in hdr: a.raw(l)
    a.raw("; @launch grid=(256,1,1) block=(512,1,1) lds=163840")
    a.raw('.amdgcn_target "amdgcn-amd-amdhsa--gfx950"')
    a.raw(".text")
    gen(a)
    a.raw(kernel_desc(KNAME, 256))
    out = sys.argv[1] if len(sys.argv) > 1 else "cdna_kernels/" + NAME + ".s"
    open(out, "w").write(a.text())

main()
```
